```python
import torch

def _softmax(x, axis=-1):
    return torch.softmax(x, dim=axis)
def _gelu(x):
    return torch.nn.functional.gelu(x, approximate="tanh")
def _silu(x):
    return torch.nn.functional.silu(x)
def _sigmoid(x):
    return torch.sigmoid(x)
def _layernorm(x, axis=-1, eps=1e-5):
    m = x.mean(dim=axis, keepdim=True)
    v = x.var(dim=axis, keepdim=True, unbiased=False)
    return (x - m) / torch.sqrt(v + eps)
def _scatter_add(tgt, idx, src, axis=0):
    return tgt.clone().index_add_(axis, idx, src)
def _segment_sum(src, seg, n):
    out = torch.zeros((n,) + src.shape[1:], dtype=src.dtype)
    return out.index_add_(0, seg, src)
def _pad(x, pw):
    flat = tuple(v for pair in reversed(pw) for v in pair)
    return torch.nn.functional.pad(x, flat)

kernel_name = 'standalone__gqa_softmax__sampling'

def setup_inputs():

    _w = (lambda a: (lambda t: t.to(torch.bfloat16) if t.is_floating_point() else t)(torch.as_tensor(a)))
    B, Hq, Hkv, Sq, Sk, D = 8, 32, 32, 16, 2048, 128
    return {
        "q": _w((lambda *s: torch.randn(*s, dtype=torch.bfloat16) * 0.8)(B, Hq, Sq, D)),
        "k": _w((lambda *s: torch.randn(*s, dtype=torch.bfloat16) * 0.8)(B, Hkv, Sk, D)),
        "v": _w((lambda *s: torch.randn(*s, dtype=torch.bfloat16) * 0.05)(B, Hkv, Sk, D)),
    }

def reference(q, k, v):
    B, Hq, Sq, D = q.shape
    Hkv = k.shape[1]
    rep = Hq // Hkv
    k = (lambda x, n, axis: torch.repeat_interleave(x, n, dim=axis))(k, rep, axis=1)
    v = (lambda x, n, axis: torch.repeat_interleave(x, n, dim=axis))(v, rep, axis=1)
    scale = D ** -0.5
    scores = torch.einsum("bhqd,bhkd->bhqk", q, k) * scale
    p = _softmax(scores, axis=-1)
    return torch.einsum("bhqk,bhkd->bhqd", p, v)
```

```python
import sys, math, struct
from build import build, KN
HEADER = """; Kernarg layout for this problem (48 bytes, ptrs only, base s[0:1]):
; @launch grid=({grid},1,1) block=({block},1,1) lds={lds}
.amdgcn_target "amdgcn-amd-amdhsa--gfx950"
.text
.globl {kn}
.p2align 8
.type {kn},@function
{kn}:
"""
TAIL = """
    s_endpgm
.section .rodata,"a"
.p2align 6
.amdhsa_kernel {kn}
  .amdhsa_next_free_vgpr {vgpr}
  .amdhsa_next_free_sgpr {sgpr}
  .amdhsa_accum_offset {acc}
  .amdhsa_group_segment_fixed_size 0
  .amdhsa_kernarg_size 48
  .amdhsa_user_sgpr_count 2
  .amdhsa_user_sgpr_kernarg_segment_ptr 1
  .amdhsa_system_sgpr_workgroup_id_x 1
.end_amdhsa_kernel
"""
def f2u(x): return struct.unpack("<I", struct.pack("<f", x))[0]

def gen(name, ring=32, flags='nt', stflags='', ts=False, qflags='', rot=0, kflags=None, vflags=None, spin=None):
    kflags = flags if kflags is None else kflags
    vflags = flags if vflags is None else vflags
    nw = 8
    NT = 8
    L = []
    A = L.append
    vK, vK2, vV, vV2 = 1, 2, 3, 4
    vT = 5
    vM, vL, vF = 8, 9, 10
    vLane = 11
    Q = 12
    S = 28
    P = 28
    O = 60
    TA = 12
    R = 92
    nv = R + ring*4
    assert nv <= 256
    OSTR = 528
    OW = 16*OSTR
    MLB = nw*OW
    lds = MLB + 1024
    cexp = 128**-0.5*math.log2(math.e)
    A("s_cmp_ge_u32 s2, 256")
    A("s_cbranch_scc1 L_end")
    A("s_load_dwordx8 s[4:11], s[0:1], 0")
    if ts:
        A("s_load_dwordx2 s[40:41], s[0:1], 40")
        A("s_memrealtime s[42:43]")
    if spin:
        A("s_memrealtime s[42:43]")
    A("v_lshrrev_b32 v5, 6, v0")
    A(f"v_and_b32 v{vLane}, 63, v0")
    A("v_readfirstlane_b32 s3, v5")
    A(f"v_and_b32 v5, 3, v0")
    A(f"v_lshlrev_b32 v5, 10, v5")
    A(f"v_bfe_u32 v6, v0, 2, 2")
    A(f"v_lshl_add_u32 v5, v6, 8, v5")
    A(f"v_bfe_u32 v6, v0, 4, 2")
    A(f"v_lshl_add_u32 v{vK}, v6, 4, v5")
    A(f"v_add_u32 v{vK2}, 0x1000, v{vK}")
    A(f"v_lshlrev_b32 v{vV}, 4, v{vLane}")
    A(f"v_add_u32 v{vV2}, 0x1000, v{vV}")
    A(f"v_and_b32 v5, 15, v0")
    A(f"v_lshlrev_b32 v5, 8, v5")
    A(f"v_lshl_add_u32 v7, v6, 4, v5")
    A("s_lshl_b32 s28, s2, 19")
    A("s_lshl_b32 s29, s2, 12")
    A("s_lshl_b32 s30, s3, 13")
    if rot:
        A(f"s_mul_i32 s31, s2, {rot*65536}")
        A(f"s_and_b32 s31, s31, 0x70000")
        A(f"s_add_u32 s30, s30, s31")
    A("s_mov_b32 s14, 0x80000"); A("s_mov_b32 s15, 0x20000")
    A("s_mov_b32 s18, 0x80000"); A("s_mov_b32 s19, 0x20000")
    A("s_mov_b32 s22, 0x1000"); A("s_mov_b32 s23, 0x20000")
    A("s_mov_b32 s26, 0x1000"); A("s_mov_b32 s27, 0x20000")
    A("s_waitcnt lgkmcnt(0)")
    A("s_add_u32 s12, s6, s28"); A("s_addc_u32 s13, s7, 0")
    A("s_add_u32 s20, s4, s29"); A("s_addc_u32 s21, s5, 0")
    loads = [('k', t, j) for t in range(NT) for j in range(8)] + [('v', t, j) for t in range(NT) for j in range(8)]
    st = {'i': 0}
    def slot(i): return R + (i % ring)*4
    def issue():
        i = st['i']
        if i >= len(loads): return
        tens, t, j = loads[i]
        r = slot(i)
        if j == 0 and i > 0:
            A("s_add_u32 s30, s30, 0x10000")
            A("s_and_b32 s30, s30, 0x7ffff")
        if tens == 'k':
            A(f"buffer_load_dwordx4 v[{r}:{r+3}], v{vK if j < 4 else vK2}, s[12:15], s30 offen offset:{(j%4)*64} {kflags}")
        else:
            A(f"buffer_load_dwordx4 v[{r}:{r+3}], v{vV if j < 4 else vV2}, s[16:19], s30 offen offset:{(j%4)*1024} {vflags}")
        st['i'] += 1
    def wait_for(i):
        n = st['i'] - 1 - i
        A(f"s_waitcnt vmcnt({n})")
    for j in range(4):
        A(f"buffer_load_dwordx4 v[{Q+4*j}:{Q+4*j+3}], v7, s[20:23], 0 offen offset:{64*j} {qflags}")
    for _ in range(4): issue()
    A("s_add_u32 s16, s8, s28"); A("s_addc_u32 s17, s9, 0")
    A("s_add_u32 s24, s10, s29"); A("s_addc_u32 s25, s11, 0")
    for _ in range(ring-4): issue()
    A(f"s_mov_b32 s32, {f2u(cexp):#x}")
    A("s_mov_b32 s33, 0x05040100")
    A("s_mov_b32 s34, 0x07060302")
    for sub in range(2*NT):
        wait_for(sub*4+3)
        if spin == 'first' and sub == 0:
            A("s_memrealtime s[36:37]")
        d = S + sub*4
        for j in range(4):
            r = slot(sub*4+j)
            c = "0" if j == 0 else f"v[{d}:{d+3}]"
            A(f"v_mfma_f32_16x16x32_bf16 v[{d}:{d+3}], v[{r}:{r+3}], v[{Q+4*j}:{Q+4*j+3}], {c}")
        for j in range(4): issue()
    if spin == 'k':
        A("s_memrealtime s[36:37]")
    A("s_nop 7")
    A(f"v_max3_f32 v5, v{S}, v{S+1}, v{S+2}")
    A(f"v_max3_f32 v6, v{S+3}, v{S+4}, v{S+5}")
    i = 6
    tog = 0
    while i < 64:
        reg = 5 + tog
        A(f"v_max3_f32 v{reg}, v{reg}, v{S+i}, v{S+i+1}")
        i += 2; tog ^= 1
    A("v_max_f32 v5, v5, v6")
    A("v_mov_b32 v6, v5")
    A("s_nop 1")
    A("v_permlane32_swap_b32 v5, v6")
    A("s_nop 0")
    A("v_max_f32 v5, v5, v6")
    A("v_mov_b32 v6, v5")
    A("s_nop 1")
    A("v_permlane16_swap_b32 v5, v6")
    A("s_nop 0")
    A("v_max_f32 v5, v5, v6")
    A(f"v_mul_f32 v{vM}, s32, v5")
    for i in range(64):
        A(f"v_fma_f32 v{S+i}, v{S+i}, s32, -v{vM}")
    for i in range(64):
        A(f"v_exp_f32 v{S+i}, v{S+i}")
    A(f"v_add_f32 v5, v{S}, v{S+1}")
    A(f"v_add_f32 v6, v{S+2}, v{S+3}")
    for i in range(4, 64, 2):
        A(f"v_add_f32 v5, v5, v{S+i}")
        A(f"v_add_f32 v6, v6, v{S+i+1}")
    for i in range(32):
        A(f"v_cvt_pk_bf16_f32 v{P+i}, v{S+2*i}, v{S+2*i+1}")
    A("v_add_f32 v5, v5, v6")
    A("v_mov_b32 v6, v5")
    A("s_nop 1")
    A("v_permlane32_swap_b32 v5, v6")
    A("s_nop 0")
    A("v_add_f32 v5, v5, v6")
    A("v_mov_b32 v6, v5")
    A("s_nop 1")
    A("v_permlane16_swap_b32 v5, v6")
    A("s_nop 0")
    A(f"v_add_f32 v{vL}, v5, v6")
    A("v_and_b32 v5, 15, v0")
    A("v_lshlrev_b32 v5, 6, v5")
    A(f"v_add_u32 v5, {MLB}, v5")
    A("s_lshl_b32 s31, s3, 3")
    A("v_add_u32 v6, s31, v5")
    A(f"ds_write_b64 v6, v[{vM}:{vM+1}]")
    done_f = False
    for t in range(NT):
        base = 64 + t*8
        if st['i'] >= len(loads) and not done_f:
            done_f = True
            A("s_waitcnt lgkmcnt(0)")
            A("s_barrier")
            for k in range(4):
                A(f"ds_read_b128 v[{TA+4*k}:{TA+4*k+3}], v5 offset:{16*k}")
            A("s_waitcnt lgkmcnt(0)")
            A(f"v_max3_f32 v6, v{TA}, v{TA+2}, v{TA+4}")
            A(f"v_max3_f32 v6, v6, v{TA+6}, v{TA+8}")
            A(f"v_max3_f32 v6, v6, v{TA+10}, v{TA+12}")
            A(f"v_max_f32 v6, v6, v{TA+14}")
            for k in range(8):
                A(f"v_sub_f32 v{TA+2*k}, v{TA+2*k}, v6")
            A(f"v_sub_f32 v{vM}, v{vM}, v6")
            for k in range(8):
                A(f"v_exp_f32 v{TA+2*k}, v{TA+2*k}")
            A(f"v_exp_f32 v{vM}, v{vM}")
            A(f"v_mul_f32 v7, v{TA}, v{TA+1}")
            for k in range(1, 8):
                A(f"v_fmac_f32 v7, v{TA+2*k}, v{TA+2*k+1}")
            A("v_rcp_f32 v7, v7")
            A("s_nop 0")
            A(f"v_mul_f32 v{vF}, v{vM}, v7")
            A("v_and_b32 v5, 15, v0")
            A(f"v_mul_u32_u24 v5, {OSTR}, v5")
            A("v_bfe_u32 v6, v0, 4, 2")
            A("v_lshl_add_u32 v5, v6, 7, v5")
            A(f"s_mul_i32 s31, s3, {OW}")
            A("v_add_u32 v5, s31, v5")
            A("v_lshrrev_b32 v6, 5, v0")
            A(f"v_mul_u32_u24 v6, {OSTR}, v6")
            A("v_and_b32 v7, 31, v0")
            A("v_lshl_add_u32 v6, v7, 4, v6")
            A("v_lshlrev_b32 v7, 3, v0")
        wait_for(base+7)
        for w in range(4):
            ta = TA + (w % 2)*8
            for p in range(4):
                r0 = slot(base+2*p) + w
                r1 = slot(base+2*p+1) + w
                A(f"v_perm_b32 v{ta+p}, v{r1}, v{r0}, s33")
            for p in range(4):
                r0 = slot(base+2*p) + w
                r1 = slot(base+2*p+1) + w
                A(f"v_perm_b32 v{ta+4+p}, v{r1}, v{r0}, s34")
            if w == 3:
                for _ in range(8): issue()
            for h in range(2):
                j = 2*w + h
                d = O + 4*j
                c = "0" if t == 0 else f"v[{d}:{d+3}]"
                if h == 1: A("s_nop 0")
                A(f"v_mfma_f32_16x16x32_bf16 v[{d}:{d+3}], v[{ta+4*h}:{ta+4*h+3}], v[{P+4*t}:{P+4*t+3}], {c}")
    assert done_f
    A("s_nop 6")
    T = R
    for j in range(8):
        for i in range(4):
            A(f"v_mul_f32 v{T+8*i+j}, v{vF}, v{O+4*j+i}")
    for c in range(8):
        A(f"ds_write_b128 v5, v[{T+4*c}:{T+4*c+3}] offset:{16*c}")
    A("s_waitcnt lgkmcnt(0)")
    A("s_barrier")
    for w in range(8):
        A(f"ds_read_b128 v[{T+4*w}:{T+4*w+3}], v6 offset:{w*OW}")
    for w in range(1, 8):
        A(f"s_waitcnt lgkmcnt({7-w})")
        for i in range(4):
            A(f"v_add_f32 v{T+i}, v{T+i}, v{T+4*w+i}")
    A(f"v_cvt_pk_bf16_f32 v{T}, v{T}, v{T+1}")
    A(f"v_cvt_pk_bf16_f32 v{T+1}, v{T+2}, v{T+3}")
    A(f"buffer_store_dwordx2 v[{T}:{T+1}], v7, s[24:27], 0 offen {stflags}")
    if ts:
        A("s_waitcnt vmcnt(0)")
        A("s_memrealtime s[44:45]")
        A("s_getreg_b32 s46, hwreg(HW_REG_XCC_ID)")
        A("s_getreg_b32 s47, hwreg(HW_REG_HW_ID)")
        A("s_waitcnt lgkmcnt(0)")
        A(f"s_mul_i32 s31, s2, {nw*16}")
        A("s_lshl_b32 s3, s3, 4")
        A("s_add_u32 s31, s31, s3")
        A("v_mov_b32 v8, s42"); A("v_mov_b32 v9, s44"); A("v_mov_b32 v10, s46"); A("v_mov_b32 v11, s47")
        A("v_mov_b32 v1, s31")
        A("global_store_dwordx4 v1, v[8:11], s[40:41]")
    if spin:
        if spin == 'all':
            A("s_waitcnt vmcnt(0)")
            A("s_memrealtime s[36:37]")
        A("s_waitcnt lgkmcnt(0)")
        A("s_mov_b32 s38, 10000")
        if spin in ('k', 'all', 'first'):
            A("s_sub_u32 s36, s36, s42")
            A("s_add_u32 s38, s38, s36")
        A("L_spin:")
        A("s_memrealtime s[44:45]")
        A("s_waitcnt lgkmcnt(0)")
        A("s_sub_u32 s44, s44, s42")
        A("s_cmp_lt_u32 s44, s38")
        A("s_cbranch_scc1 L_spin")
    A("L_end:")
    txt = HEADER.format(grid=256, block=nw*64, lds=lds, kn=KN) + "\n".join(("    "+x if not x.endswith(":") else x) for x in L) + TAIL.format(kn=KN, vgpr=nv, sgpr=48, acc=(nv+3)//4*4)
    open(name+".s", "w").write(txt)
    return build(name+".s")
if __name__ == "__main__":
    print(gen("v1"))
```

```python
import sys, math, struct
from build import build, KN
from gen1 import TAIL, f2u

HEADER = """; out = softmax(Q K^T / sqrt(D)) V   for B=8, H=32, Sq=16, Sk=2048, D=128, bf16 in, bf16 out.
;   0: q (8,32,16,128)   8: k (8,32,2048,128)   16: v (8,32,2048,128)   24: out (8,32,16,128)
;
;                       512 x 16 scores in registers and tracks the row maximum.  The true maximum over all
;                       LDS as bf16; wave c accumulates O^T for its 32 columns of d over all keys (V^T read
;   wave 5     balance: workgroups do not get equal shares of the memory system, and the slowest one ends the
;                       counts of the 32 workgroups with the same id mod 8; the loader of a workgroup that is
;                       the mean of their group by the rank they get.  All of this picks a prefetch depth only:
; rows) and spreads the workgroups over the HBM stacks and bank groups.
; @launch grid=(256,1,1) block=(384,1,1) lds={lds}
.amdgcn_target "amdgcn-amd-amdhsa--gfx950"
.text
.globl {kn}
.p2align 8
.type {kn},@function
{kn}:
"""

def gen(name, hi=19, lo=16, gran=2, eo=4, thr=0, bias=17, fbstop=60, ts=False, sync=False, amp=None, codepf=True, pad=0, qflags='nt', stflags='', xb=True, tout=0, tbal='', flo=None, fhi=None, XT=None, vp=False, cyc=False, fakest=0, nsw=False, f0=0, t1lo=False, f31=False, xg=0, XSTR=4352, XBASE=0x100000, k31=None, shb=None, xlate=False, xbf='', boost=None, qfirst=0, fine=0, tl=False, al12=False):
    L = []
    def A(x, c=None):
        L.append(x if c is None else f"{x:<72}; {c}")
    def C(c): L.append("; " + c)
    R = 8
    RING = R*16384
    PB = RING
    QB = PB + 4096
    MX = QB + 4096
    LB = MX + 256
    TB = LB + 256
    lds = TB + (5120 if nsw == 2 else 0)
    assert hi + gran <= 32 and hi + gran + 16 <= 63
    inner = [15, 12]; outer = [13, 14, 16, 17, 18]
    mask = sum(1 << b for b in outer)
    cexp = 128**-0.5*math.log2(math.e)
    if sync:
        A("s_memrealtime s[42:43]"); A("s_waitcnt lgkmcnt(0)")
        A("s_add_u32 s44, s42, 2047"); A("s_and_b32 s44, s44, 0xfffff800")
        A("L_sy:")
        A("s_memrealtime s[42:43]"); A("s_waitcnt lgkmcnt(0)")
        A("s_sub_u32 s45, s42, s44"); A("s_cmp_lt_i32 s45, 0"); A("s_cbranch_scc1 L_sy")
    A("s_load_dwordx2 s[12:13], s[0:1], 8", "k -> base of the loader's SRD s[12:15]")
    A("s_load_dwordx8 s[4:11], s[0:1], 0", "q k v out")
    if ts: A("s_mov_b32 s38, 0")
    if ts or amp:
        A("s_load_dwordx2 s[40:41], s[0:1], 40")
        A("s_memrealtime s[42:43]")
    A("s_cmpk_ge_u32 s2, 256", "extra workgroups leave")
    A("s_cbranch_scc1 L_end")
    A("v_readfirstlane_b32 s3, v0", "64 * wave")
    A("v_and_b32 v1, 63, v0", "lane")
    if al12:
        A("s_cmpk_eq_u32 s3, 320")
        A("s_cbranch_scc1 L_bal")
    A("v_lshlrev_b32 v2, 4, v1")
    A("v_and_b32 v3, 48, v1")
    if nsw:
        A("v_lshlrev_b32 v3, 1, v3")
        A("v_xor_b32 v2, v2, v3", "DMA source offset in 1 KiB (4 rows): 16-B chunk ^= f(row) = (row&3)<<1 | (row&4)<<1")
    else:
        A("v_lshlrev_b32 v3, 2, v3")
        A("v_xor_b32 v2, v2, v3", "DMA source offset in 1 KiB: row = lane>>4, 16-B chunk ^= (row&3)<<2")
    C("head = (wg & 0xe0) | (wg & 7) << 2 | (wg >> 3) & 3")
    A("s_and_b32 s28, s2, 7")
    A("s_lshl_b32 s28, s28, 2")
    A("s_bfe_u32 s29, s2, 0x20003")
    A("s_or_b32 s28, s28, s29")
    A("s_lshr_b32 s27, s2, 5")
    A("s_lshl_b32 s26, s27, 5")
    A("s_or_b32 s28, s28, s26")
    A("s_mov_b32 s15, 0x20000")
    A("s_cmp_lg_u32 s3, 0")
    A("s_cbranch_scc1 L_other")
    C("======================= wave 0: loader =======================")
    if qfirst: A("s_load_dwordx2 s[24:25], s[0:1], 0", "q -> base of SRD s[24:27]")
    if codepf:
        C("while the kernarg load is under way, pull the rest of the code into L2 (one dword per 128-B line)")
        A("s_getpc_b64 s[20:21]")
        A("L_pc:")
        A("v_lshlrev_b32 v3, 7, v1")
        A("v_min_u32 v3, L_end-L_pc, v3")
        A("v_mov_b32 v5, s21")
        A("v_add_co_u32 v4, vcc, s20, v3")
        A("s_setprio 3")
        A("s_lshl_b32 s28, s28, 19")
        A("v_addc_co_u32 v5, vcc, 0, v5, vcc")
        A("global_load_dword v6, v[4:5], off")
    else:
        A("s_setprio 3")
        A("s_lshl_b32 s28, s28, 19")
    A("s_lshl_b32 s27, s27, 12", "wg bits 5..7 -> xor of address bits 12..14")
    A("s_lshl_b32 s29, s29, 17", "wg bits 3..4 -> xor of address bits 17..18")
    A("s_or_b32 s27, s27, s29")
    A("s_or_b32 s27, s27, s28", "s27 = head base | per-workgroup xor")
    if shb is not None:
        if shb == 'all':
            A("s_movk_i32 s18, 0x3000")
        else:
            A(f"s_bitcmp1_b32 s2, {shb}")
            A("s_movk_i32 s18, 0x1000")
            A("s_cselect_b32 s18, 0x3000, s18", "half of the workgroups change die side in the middle of a tile")
        A("s_or_b32 s19, s18, 0x8000")
    A("s_mov_b32 s14, 0x8000000")
    A("s_mov_b32 s22, 0", "ring offset of the tile")
    A("s_mov_b32 s36, 0", "tile number spread over address bits 13,14,16,17,18")
    A("s_mov_b32 s23, 0", "tile 0..63 (K: 0..31, V: 32..63)")
    A(f"v_mov_b32 v7, {LB}")
    if nsw: A("v_xor_b32 v8, 0x80, v2", "the same for rows 4..7 (mod 8)")
    A("s_mov_b32 s16, s27")
    if qfirst:
        A("s_mov_b32 s37, s27")
        A("s_lshr_b32 s17, s28, 7", "head * 4096")
        A("s_mov_b32 s26, 0x100000")
        A("s_mov_b32 s27, 0x20000")
        A(f"s_mov_b32 m0, {QB}")
        A("s_waitcnt lgkmcnt(0)")
        if tl: A("s_memrealtime s[50:51]")
        for j in range(4):
            A(f"buffer_load_dwordx4 v{8 if (nsw and j & 1) else 2}, s[24:27], s17 offen offset:{j*1024} {qflags} lds", "Q first, while the memory system is still idle" if j == 0 else None)
        A("s_mov_b32 m0, 0")
        A("s_nop 0")
    else:
        A("s_mov_b32 m0, 0")
        A("s_waitcnt lgkmcnt(0)")
    sX = "s37" if qfirst else "s27"
    def body(n, tag=None, stamp=None):
        for g in range(4):
            if g == 2 and XT and tag:
                A(f"s_cmp_eq_u32 s23, {XT}")
                A(f"s_cbranch_scc1 L_x{tag}")
                A(f"L_xb{tag}:")
            off = ((g & 1) << inner[0]) | ((g >> 1) << inner[1])
            if g == 0:
                so = "s16"
            else:
                A(f"s_add_u32 m0, s22, {g*4096:#x}")
                if shb is not None and g >= 2: A(f"s_xor_b32 s17, s16, s{16+g}")
                else: A(f"s_xor_b32 s17, s16, {off:#x}")
                so = "s17"
            for j in range(4):
                if n is not None and (4*g+j) % gran == 0: A(f"s_waitcnt vmcnt({n})")
                if stamp is not None and j == 0:
                    A(f"s_memrealtime s[{stamp+2*g}:{stamp+2*g+1}]")
                A(f"buffer_load_dwordx4 v{8 if (nsw and j & 1) else 2}, s[12:15], {so} offen offset:{j*1024} nt lds")
    C("first and last tile: no waits")
    A("L_free:")
    body(None)
    if f31:
        A("s_waitcnt vmcnt(32)")
        A("s_cmp_eq_u32 s23, 31")
        A("s_cbranch_scc1 L_tail")
    A("s_cmp_lg_u32 s23, 0")
    A("s_cbranch_scc1 L_drain")
    A("s_movk_i32 s22, 0x4000")
    A("s_movk_i32 s36, 0x2000")
    A("s_mov_b32 s23, 1")
    A("s_mov_b32 m0, s22")
    A(f"s_xor_b32 s16, s36, {sX}")
    if tl:
        A("s_memrealtime s[52:53]")
        body(hi, None, 54)
        A("s_memrealtime s[62:63]")
        A("s_barrier")
        A("s_mov_b32 s22, 0x8000"); A("s_movk_i32 s36, 0x4000"); A("s_mov_b32 s23, 2"); A("s_mov_b32 m0, s22"); A(f"s_xor_b32 s16, s36, {sX}")
        body(hi, None, 64)
        A("s_memrealtime s[72:73]")
        A("s_branch L_tail")
    if t1lo: A("s_branch L_lo")
    C(f"tile with at most {hi+gran} KiB in flight")
    A("L_hi:")
    body(hi, 'h')
    A("s_branch L_tail")
    C(f"tile with at most {lo+gran} KiB in flight")
    A("L_lo:")
    body(lo, 'l')
    A("L_tail:")
    A("s_barrier", "end of tile T: at most 32 loads outstanding, so tile T-2 has landed")
    if amp and amp[0].startswith('ck'):
        A(f"s_cmp_eq_u32 s23, {int(amp[0][2:])}")
        A("s_cbranch_scc0 L_nck")
        A("s_memrealtime s[46:47]")
        A("L_nck:")
    A("ds_read_b32 v14, v7", "depth flag of the balance wave")
    A("s_add_u32 s22, s22, 0x4000")
    A(f"s_and_b32 s22, s22, {RING-1:#x}")
    A(f"s_or_b32 s36, s36, {(~mask) & 0xffffffff:#x}")
    A("s_add_u32 s36, s36, 1")
    A(f"s_and_b32 s36, s36, {mask:#x}")
    A("s_mov_b32 m0, s22")
    A(f"s_xor_b32 s16, s36, {sX}")
    A("s_add_u32 s23, s23, 1")
    A("s_cmp_eq_u32 s23, 32", "K -> V")
    A("s_cselect_b32 s12, s8, s12")
    A("s_cselect_b32 s13, s9, s13")
    if f31:
        A("s_and_b32 s17, s23, 31")
        A("s_cmp_eq_u32 s17, 31")
    else:
        A("s_cmp_eq_u32 s23, 63")
    A("s_cbranch_scc1 L_free")
    if k31:
        A(f"s_sub_u32 s17, s23, {k31[0]}")
        A(f"s_cmp_lt_u32 s17, {k31[1]}")
        A("s_cbranch_scc1 L_k31")
    A("s_waitcnt lgkmcnt(0)")
    A("v_readfirstlane_b32 s33, v14")
    A("s_nop 0")
    if boost:
        A("s_cmp_eq_u32 s33, 1")
        A("s_cbranch_scc1 L_lo")
        A("s_cmp_eq_u32 s33, 0")
        A("s_cbranch_scc1 L_hi")
        C(f"tile with at most {boost[1]+gran} KiB in flight")
        body(boost[1], 'b')
        A("s_branch L_tail")
    else:
        A("s_cmp_lg_u32 s33, 0")
        A("s_cbranch_scc1 L_lo")
        A("s_branch L_hi")
    if k31:
        A("L_k31:")
        body(k31[2])
        A("s_branch L_tail")
    A("L_drain:")
    if not XT: A("s_barrier", "tile 60 (landed before the previous barrier)")
    A("s_waitcnt vmcnt(32)")
    A("s_barrier", "tile 61")
    A("s_waitcnt vmcnt(16)")
    A("s_barrier", "tile 62")
    A("s_waitcnt vmcnt(0)")
    if ts: A("s_memrealtime s[38:39]")
    A("s_barrier", "tile 63")
    def ampcode():
        what, stat = amp
        A("s_memrealtime s[36:37]")
        A("s_waitcnt lgkmcnt(0)")
        if what == 'start': A("s_mov_b32 s36, s42")
        if what == 'dur': A("s_sub_u32 s36, s36, s42")
        if what.startswith('ck'): A("s_sub_u32 s36, s46, s42")
        if what == 'tail': A("s_sub_u32 s36, s36, s46")
        A("s_and_b32 s36, s36, 0x7fffff")
        def spin(lab, lim):
            A(f"{lab}:")
            A("s_memrealtime s[44:45]"); A("s_waitcnt lgkmcnt(0)")
            A("s_sub_u32 s44, s44, s42"); A(f"s_cmp_lt_u32 s44, {lim}"); A(f"s_cbranch_scc1 {lab}")
        spin("L_sp0", 5000)
        A("s_cmp_lg_u32 s2, 0"); A("s_cbranch_scc1 L_nz"); A("s_mov_b32 s44, 0")
        for k in range(3): A(f"s_atomic_and s44, s[40:41], {4*k}")
        A("L_nz:")
        spin("L_sp1", 6000)
        A("s_sub_u32 s37, 0x800000, s36")
        if stat.startswith('xm'):
            A("s_getreg_b32 s38, hwreg(HW_REG_XCC_ID, 0, 3)")
            A("s_lshl_b32 s38, 1, s38")
            A(f"s_and_b32 s38, s38, {int(stat[2:], 16)}")
            A("s_cselect_b32 s37, s36, 0")
            A("s_atomic_add s37, s[40:41], 0")
        else:
            A("s_atomic_umax s36, s[40:41], 0"); A("s_atomic_umax s37, s[40:41], 4")
        if stat == 'span':
            A("s_and_b32 s38, s42, 0x7fffff"); A("s_atomic_add s38, s[40:41], 8")
        else:
            A("s_atomic_add s36, s[40:41], 8")
        spin("L_sp2", 8000)
        A("s_mov_b32 s36, 0"); A("s_mov_b32 s37, 0"); A("s_mov_b32 s38, 0")
        A("s_atomic_add s36, s[40:41], 0 glc"); A("s_atomic_add s37, s[40:41], 4 glc"); A("s_atomic_add s38, s[40:41], 8 glc")
        A("s_waitcnt lgkmcnt(0)")
        A("s_sub_u32 s37, 0x800000, s37"); A("s_lshr_b32 s38, s38, 8")
        if stat == 'maxmin': A("s_sub_u32 s36, s36, s37")
        elif stat == 'maxmean': A("s_sub_u32 s36, s36, s38")
        elif stat.startswith('xm'):
            nb = bin(int(stat[2:], 16)).count('1')
            A(f"s_lshr_b32 s36, s36, {5 + nb.bit_length() - 1}")
            A("s_sub_u32 s36, s36, s38"); A("s_add_u32 s36, s36, 200")
        elif stat.startswith('mo'): A(f"s_sub_u32 s36, s38, {int(stat[2:])}")
        elif stat == 'span':
            A("s_sub_u32 s36, s36, s38"); A("s_sub_u32 s36, s36, 3400")
        A("s_min_u32 s36, s36, 1500"); A("s_mul_i32 s36, s36, 10"); A("s_add_u32 s36, s36, 10000")
        spin("L_sp3", "s36")
    if tl:
        A("v_mov_b32 v12, 0")
        for k in range(12): A(f"v_writelane_b32 v12, s{50+2*k}, {40+k}")
        A("s_mul_i32 s31, s2, 256"); A("v_lshlrev_b32 v13, 2, v1"); A("v_add_u32 v13, s31, v13")
        A("s_mov_b32 exec_lo, 0"); A("s_mov_b32 exec_hi, 0xfff00")
        A("global_store_dword v13, v12, s[40:41]")
        A("s_mov_b64 exec, -1")
    if amp and amp[0] not in ('cend', 'tail'): A("s_branch L_amp")
    elif ts: A("s_branch L_fin")
    else: A("s_endpgm")
    if XT:
        for tag in ('hlb' if boost else 'hl'):
            A(f"L_x{tag}:")
            A("s_barrier", "one more barrier: the compute waves catch up the tile they lost at the max exchange")
            A(f"s_branch L_xb{tag}")
    vKa = 4
    vVa, vPw, vPr, vMx, vOo = 8, 9, 10, 11, 12
    T = 16
    AF = 20
    PF = 36
    Q = 44
    O0, O1, LA = 60, 64, 68
    ONE = 72
    S = 76
    nv = S + 128 + (4 if ts else 0)
    C("======================= waves 1..4: compute =======================")
    A("L_other:")
    A("s_lshr_b32 s3, s3, 6")
    A("s_sub_u32 s3, s3, 1", "c = 0..3")
    if not al12:
        A("s_cmp_eq_u32 s3, 4")
        A("s_cbranch_scc1 L_bal")
    A("s_lshl_b32 s29, s28, 12", "head * 4096")
    if not qfirst:
        A("s_lshl_b32 s30, s3, 10")
        A(f"s_add_u32 m0, s30, {QB}")
    if nsw and not qfirst:
        A("s_lshl_b32 s31, s3, 7")
        A("s_and_b32 s31, s31, 0x80")
        A("v_xor_b32 v2, s31, v2")
    if not qfirst: A("s_movk_i32 s14, 0x1000")
    A("s_movk_i32 s26, 0x1000"); A("s_mov_b32 s27, 0x20000")
    A("s_waitcnt lgkmcnt(0)")
    if not qfirst:
        A("s_add_u32 s12, s4, s29", "Q SRD s[12:15]"); A("s_addc_u32 s13, s5, 0")
        A(f"buffer_load_dwordx4 v2, s[12:15], s30 offen {qflags} lds".replace("  ", " "), "4 rows of Q -> LDS, same swizzle as K")
    A("s_add_u32 s24, s10, s29", "out SRD s[24:27]"); A("s_addc_u32 s25, s11, 0")
    if tout == 1:
        A("buffer_load_dword v20, off, s[24:27], 0", "address translation of the out page, value unused")
    vVb, vSel = 13, 0
    if nsw:
        vSel = 204 if ts else 0
        C("lane = 16 g + r.  K/Q fragment address: r*256 + ((4j + g) ^ f(r))*16 for k-step j")
        A("v_and_b32 v3, 15, v1")
        A("v_lshrrev_b32 v14, 4, v1")
        A("v_and_b32 v13, 7, v1")
        A("v_lshlrev_b32 v13, 1, v13", "f(r)")
        A("v_xor_b32 v13, v13, v14")
        A("v_lshlrev_b32 v13, 4, v13")
        A(f"v_lshl_add_u32 v{vKa}, v3, 8, v13")
        if nsw == 2:
            C("output goes through LDS (row stride 80 B) so that 4 neighbouring lanes store 64 contiguous bytes")
            A(f"s_mul_i32 s31, s3, 1280")
            A(f"s_add_u32 s31, s31, {TB}")
            A(f"v_mul_u32_u24 v13, 80, v3")
            A(f"v_lshl_add_u32 v13, v14, 3, v13")
            A(f"v_add_u32 v{vSel}, s31, v13", "write: q*80 + 8g (+32 for the second 16 columns)")
            A("v_lshrrev_b32 v13, 2, v1")
            A("v_and_b32 v14, 3, v1")
            A(f"v_lshlrev_b32 v14, 4, v14")
            A(f"v_lshl_add_u32 v{vOo}, v13, 8, v14")
            A(f"v_mul_u32_u24 v13, 80, v13")
            A(f"v_add3_u32 v2, v13, v14, s31", "read: (lane>>2)*80 + (lane&3)*16")
            A("s_lshl_b32 s31, s3, 6")
            A(f"v_add_u32 v{vOo}, s31, v{vOo}", "out: (lane>>2)*256 + 64c + (lane&3)*16")
        else:
            C("out offset: rows 4g..4g+3, byte 64c + (r&1)*32 + (r>>1)*4")
            A("v_and_b32 v13, 1, v1")
            A(f"v_lshlrev_b32 v{vOo}, 10, v14")
            A(f"v_lshl_add_u32 v{vOo}, v13, 5, v{vOo}")
            A("v_cmp_eq_u32 vcc, 0, v13")
            A("v_lshrrev_b32 v13, 1, v3")
            A(f"v_lshl_add_u32 v{vOo}, v13, 2, v{vOo}")
            A("s_lshl_b32 s31, s3, 6")
            A(f"v_add_u32 v{vOo}, s31, v{vOo}")
            A("v_mov_b32 v13, 0x03020706")
            A("v_mov_b32 v14, 0x05040100")
            A(f"v_cndmask_b32 v{vSel}, v13, v14, vcc", "byte selector that pairs neighbouring columns")
    else:
        C("lane = 16 g + r.  K/Q fragment address: r*256 + ((j ^ (r&3))*4 + g)*16 for k-step j")
        A("v_and_b32 v3, 15, v1")
        A(f"v_lshlrev_b32 v{vOo}, 8, v3")
        A("v_and_b32 v13, 3, v1")
        A("v_lshrrev_b32 v14, 4, v1")
        A(f"v_lshl_add_u32 v{vOo}, v14, 4, v{vOo}")
        A(f"v_lshl_add_u32 v{vKa}, v13, 6, v{vOo}")
        A("s_lshl_b32 s31, s3, 6")
        A(f"v_add_u32 v{vOo}, s31, v{vOo}", "out offset: q*256 + 64c + 16g")
    if fakest == 1:
        A("s_lshl_b32 s31, s3, 10"); A(f"v_lshl_add_u32 v{vOo}, v1, 4, s31")
    if fakest == 2:
        A(f"v_lshrrev_b32 v{vOo}, 2, v1"); A(f"v_lshlrev_b32 v{vOo}, 8, v{vOo}"); A(f"v_lshl_add_u32 v{vOo}, v13, 4, v{vOo}"); A(f"v_add_u32 v{vOo}, s31, v{vOo}")
    A(f"v_lshlrev_b32 v15, 4, v3")
    A(f"v_add_u32 v15, {MX}, v15", "max exchange row of q")
    A(f"v_add_u32 v{T}, {QB}, v{vKa}")
    for j in range(1, 4):
        A(f"v_xor_b32 v{T+j}, {j<<6}, v{T}")
    A("s_lshl_b32 s31, s3, 12")
    A(f"v_add_u32 v{vKa}, s31, v{vKa}")
    for j in range(1, 4):
        A(f"v_xor_b32 v{vKa+j}, {j<<6}, v{vKa}")
    if nsw:
        C("V transpose-read address: row = lane>>2, chunk = (4c + 2dt + (lane>>1&1)) ^ f(row), + 8*(lane&1)")
        A("v_lshrrev_b32 v3, 2, v1")
        A("v_and_b32 v13, 7, v3")
        A("v_lshlrev_b32 v13, 1, v13")
        A("s_lshl_b32 s31, s3, 2")
        A("v_xor_b32 v13, s31, v13")
        A("v_lshlrev_b32 v13, 4, v13")
        A(f"v_lshl_add_u32 v{vVa}, v3, 8, v13")
        A("v_and_b32 v13, 3, v1")
        A(f"v_lshl_add_u32 v{vVa}, v13, 3, v{vVa}")
        A(f"v_xor_b32 v{vVb}, 32, v{vVa}")
    else:
        C("V transpose-read address: row = lane>>2, chunk = (c ^ (row&3))*4 + (lane&3)")
        A(f"v_lshrrev_b32 v3, 2, v1")
        A(f"v_lshlrev_b32 v{vVa}, 8, v3")
        A(f"v_and_b32 v3, 3, v3")
        A(f"v_xor_b32 v3, s3, v3")
        A(f"v_lshl_add_u32 v{vVa}, v3, 6, v{vVa}")
        A(f"v_lshl_add_u32 v{vVa}, v13, 4, v{vVa}")
    C("P buffer [2][u][lane][h][4 bf16]: wave c = 2u+h writes 8 B, every wave reads 16 B per u")
    A(f"v_lshlrev_b32 v{vPr}, 4, v1")
    A(f"v_add_u32 v{vPr}, {PB}, v{vPr}")
    A("s_lshr_b32 s31, s3, 1")
    A("s_lshl_b32 s31, s31, 10")
    A("s_and_b32 s30, s3, 1")
    A("s_lshl_b32 s30, s30, 3")
    A("s_add_u32 s31, s31, s30")
    A(f"v_add_u32 v{vPw}, s31, v{vPr}")
    A(f"v_mov_b32 v{vMx}, 0xff800000", "running max = -inf")
    A(f"v_mov_b32 v{ONE}, 0x3f803f80", "bf16 ones")
    for i in range(1, 4):
        A(f"v_mov_b32 v{ONE+i}, v{ONE}")
    for i in range(12):
        A(f"v_mov_b32 v{O0+i}, 0")
    A(f"s_mov_b32 s32, {f2u(cexp):#x}", "log2(e) / sqrt(128)")
    A("s_mov_b32 s33, 0")
    if ts: A("v_mov_b32 v0, 0")
    A("s_barrier", "end of loader tile 1: nothing to do yet")
    if not qfirst: A("s_waitcnt vmcnt(0)")
    A("s_barrier", "Q and K tile 0")
    for j in range(4):
        A(f"ds_read_b128 v[{Q+4*j}:{Q+4*j+3}], v{T+j}")
    A("s_branch L_k1")
    for _ in range(pad): A("s_nop 0")
    C("---- K phase: S^T[16 keys][16 q] per tile")
    A("L_k:")
    A("s_barrier")
    A("L_k1:")
    if ts: A("s_memrealtime s[44:45]")
    for j in range(4):
        A(f"ds_read_b128 v[{AF+4*j}:{AF+4*j+3}], v{vKa+j}")
    A(f"v_add_u32 v{vKa}, 0x4000, v{vKa}")
    A(f"v_and_b32 v{vKa}, {RING-1:#x}, v{vKa}")
    for j in range(1, 4):
        A(f"v_xor_b32 v{vKa+j}, {j<<6}, v{vKa}")
    for j in range(4):
        A(f"s_waitcnt lgkmcnt({0 if ts else 3-j})")
        c = "0" if j == 0 else f"v[{T}:{T+3}]"
        A(f"v_mfma_f32_16x16x32_bf16 v[{T}:{T+3}], v[{AF+4*j}:{AF+4*j+3}], v[{Q+4*j}:{Q+4*j+3}], {c}")
    if ts:
        if fine:
            A("s_lshr_b32 s46, s33, 2"); A("s_min_u32 s46, s46, 7")
        else:
            A("s_lshr_b32 s46, s33, 4")
        A("s_add_u32 m0, s46, 24"); A("v_writelane_b32 v0, s44, m0")
    A("s_nop 7", "MFMA result -> VALU: 8 wait states")
    A(f"v_max3_f32 v{vMx}, v{vMx}, v{T}, v{T+1}")
    A(f"v_max3_f32 v{vMx}, v{vMx}, v{T+2}, v{T+3}")
    A("s_set_gpr_idx_on s33, gpr_idx(DST)", f"S[4 tile .. 4 tile + 3] in v{S}..v{S+127}")
    for i in range(4):
        A(f"v_mov_b32 v{S+i}, v{T+i}")
    A("s_set_gpr_idx_off")
    A("s_add_u32 s33, s33, 4")
    A("s_cmpk_lt_u32 s33, 128")
    A("s_cbranch_scc1 L_k")
    C("---- row maximum over the 4 lane groups, then over the 4 waves")
    A(f"v_mov_b32 v3, v{vMx}")
    A("s_lshl_b32 s31, s3, 2")
    A("v_add_u32 v14, s31, v15")
    A(f"v_permlane32_swap_b32 v{vMx}, v3")
    A("s_nop 0")
    A(f"v_max_f32 v{vMx}, v{vMx}, v3")
    A(f"v_mov_b32 v3, v{vMx}")
    A("s_nop 1", "VALU write -> permlane: 2 wait states")
    A(f"v_permlane16_swap_b32 v{vMx}, v3")
    A("s_nop 0")
    A(f"v_max_f32 v{vMx}, v{vMx}, v3")
    A(f"ds_write_b32 v14, v{vMx}")
    A("s_mov_b32 s33, 0")
    A("s_waitcnt lgkmcnt(0)")
    A("s_barrier", "from here on the compute waves run one more tile behind the loader")
    if tout == 2:
        A("buffer_load_dword v44, off, s[24:27], 0", "address translation of the out page, value unused")
    A(f"ds_read_b128 v[{T}:{T+3}], v15")
    A("s_waitcnt lgkmcnt(0)")
    A(f"v_max3_f32 v{vMx}, v{T}, v{T+1}, v{T+2}")
    A(f"v_max_f32 v{vMx}, v{vMx}, v{T+3}")
    A(f"v_mul_f32 v{vMx}, s32, v{vMx}")
    if vp:
        C("---- V phase.  P of tile t+1 is made while tile t is read")
        for i in range(4):
            A(f"v_fma_f32 v{T+i}, v{S+i}, s32, -v{vMx}")
        for i in range(4):
            A(f"v_exp_f32 v{T+i}, v{T+i}")
        A("s_nop 0", "transcendental -> VALU: 1 wait state")
        A(f"v_cvt_pk_bf16_f32 v{T}, v{T}, v{T+1}")
        A(f"v_cvt_pk_bf16_f32 v{T+1}, v{T+2}, v{T+3}")
        A(f"ds_write_b64 v{vPw}, v[{T}:{T+1}]")
        A(f"v_xor_b32 v{vPw}, 0x800, v{vPw}")
        A("L_v:")
        A("s_waitcnt lgkmcnt(0)")
        A("s_barrier")
        if ts:
            A("s_memrealtime s[44:45]"); A("s_lshr_b32 s46, s33, 4"); A("s_add_u32 m0, s46, 32"); A("s_waitcnt lgkmcnt(0)"); A("v_writelane_b32 v0, s44, m0")
        if amp and amp[0] == 'tail':
            A("s_memrealtime s[46:47]"); A("s_waitcnt lgkmcnt(0)")
        if cyc: A("s_memtime s[48:49]")
        for u in range(2):
            A(f"ds_read_b128 v[{PF+4*u}:{PF+4*u+3}], v{vPr} offset:{u*1024}")
        for u in range(2):
            for dt in range(2):
                for h in range(2):
                    a = AF + (2*u+dt)*4 + 2*h
                    A(f"ds_read_b64_tr_b16 v[{a}:{a+1}], v{vVa} offset:{(2*u+h)*4096 + 8*dt}")
        A("s_add_u32 s33, s33, 4")
        A("s_and_b32 s33, s33, 127", "the last pass remakes P of tile 0 (unused)")
        A("s_set_gpr_idx_on s33, gpr_idx(SRC0)")
        for i in range(4):
            A(f"v_fma_f32 v{T+i}, v{S+i}, s32, -v{vMx}")
        A("s_set_gpr_idx_off")
        for i in range(4):
            A(f"v_exp_f32 v{T+i}, v{T+i}")
        def mf(o, a, u, c=None):
            A(f"v_mfma_f32_16x16x32_bf16 v[{o}:{o+3}], v[{a}:{a+3}], v[{PF+4*u}:{PF+4*u+3}], v[{o}:{o+3}]", c)
        A("s_waitcnt lgkmcnt(9)")
        mf(LA, ONE, 0, "l += ones . P^T")
        A(f"v_cvt_pk_bf16_f32 v{T}, v{T}, v{T+1}")
        A(f"v_xor_b32 v{vPr}, 0x800, v{vPr}")
        A("s_waitcnt lgkmcnt(8)")
        mf(LA, ONE, 1)
        A(f"v_cvt_pk_bf16_f32 v{T+1}, v{T+2}, v{T+3}")
        A(f"ds_write_b64 v{vPw}, v[{T}:{T+1}]")
        A("s_waitcnt lgkmcnt(7)")
        mf(O0, AF, 0, "O^T += V^T . P^T")
        A(f"v_xor_b32 v{vPw}, 0x800, v{vPw}")
        A(f"v_add_u32 v{vVa}, 0x4000, v{vVa}")
        A("s_waitcnt lgkmcnt(5)")
        mf(O1, AF+4, 0)
        A(f"v_and_b32 v{vVa}, {RING-1:#x}, v{vVa}")
        A("s_cmp_lg_u32 s33, 0")
        A("s_waitcnt lgkmcnt(3)")
        mf(O0, AF+8, 1)
        A("s_waitcnt lgkmcnt(1)")
        mf(O1, AF+12, 1)
        A("s_cbranch_scc1 L_v")
    else:
        C("---- V phase")
        A("L_v:")
        A("s_set_gpr_idx_on s33, gpr_idx(SRC0)")
        for i in range(4):
            A(f"v_fma_f32 v{T+i}, v{S+i}, s32, -v{vMx}")
        A("s_set_gpr_idx_off")
        for i in range(4):
            A(f"v_exp_f32 v{T+i}, v{T+i}")
        A("s_add_u32 s33, s33, 4")
        A(f"v_cvt_pk_bf16_f32 v{T}, v{T}, v{T+1}")
        A(f"v_cvt_pk_bf16_f32 v{T+1}, v{T+2}, v{T+3}")
        A(f"ds_write_b64 v{vPw}, v[{T}:{T+1}]")
        A(f"v_xor_b32 v{vPw}, 0x800, v{vPw}")
        if ts:
            A("s_sub_u32 s46, s33, 4"); A("s_lshr_b32 s46, s46, 4"); A("s_add_u32 s46, s46, 32")
        A("s_cmpk_lt_u32 s33, 128")
        A("s_waitcnt lgkmcnt(0)")
        A("s_barrier")
        if ts:
            A("s_memrealtime s[44:45]"); A("s_waitcnt lgkmcnt(0)"); A("s_mov_b32 m0, s46"); A("v_writelane_b32 v0, s44, m0")
        if amp and amp[0] == 'tail':
            A("s_memrealtime s[46:47]"); A("s_waitcnt lgkmcnt(0)")
        if cyc: A("s_memtime s[48:49]")
        for u in range(2):
            A(f"ds_read_b128 v[{PF+4*u}:{PF+4*u+3}], v{vPr} offset:{u*1024}")
        for u in range(2):
            for dt in range(2):
                for h in range(2):
                    a = AF + (2*u+dt)*4 + 2*h
                    if nsw: A(f"ds_read_b64_tr_b16 v[{a}:{a+1}], v{vVb if dt else vVa} offset:{(2*u+h)*4096}")
                    else: A(f"ds_read_b64_tr_b16 v[{a}:{a+1}], v{vVa} offset:{(2*u+h)*4096 + 8*dt}")
        if cyc: A("s_memtime s[50:51]")
        if nsw == 2:
            def mf(o, a, u, c=None):
                A(f"v_mfma_f32_16x16x32_bf16 v[{o}:{o+3}], v[{a}:{a+3}], v[{PF+4*u}:{PF+4*u+3}], v[{o}:{o+3}]", c)
            A("s_waitcnt lgkmcnt(8)")
            mf(LA, ONE, 0, "l += ones . P^T")
            A(f"v_xor_b32 v{vPr}, 0x800, v{vPr}")
            A("s_waitcnt lgkmcnt(6)")
            mf(O0, AF, 0, "O^T += V^T . P^T")
            A(f"v_add_u32 v{vVa}, 0x4000, v{vVa}")
            mf(LA, ONE, 1)
            A("s_waitcnt lgkmcnt(4)")
            mf(O1, AF+4, 0)
            A(f"v_and_b32 v{vVa}, {RING-1:#x}, v{vVa}")
            A("s_waitcnt lgkmcnt(2)")
            mf(O0, AF+8, 1)
            A(f"v_xor_b32 v{vVb}, 32, v{vVa}")
            A("s_waitcnt lgkmcnt(0)")
            mf(O1, AF+12, 1)
        else:
            A(f"v_xor_b32 v{vPr}, 0x800, v{vPr}")
            A(f"v_add_u32 v{vVa}, 0x4000, v{vVa}")
            A(f"v_and_b32 v{vVa}, {RING-1:#x}, v{vVa}")
            if nsw: A(f"v_xor_b32 v{vVb}, 32, v{vVa}")
            for u in range(2):
                A(f"s_waitcnt lgkmcnt({9-u})")
                if nsw: A(f"v_mfma_f32_16x16x32_bf16 v[{LA}:{LA+3}], v[{PF+4*u}:{PF+4*u+3}], v[{ONE}:{ONE+3}], v[{LA}:{LA+3}]", "l += P . ones" if u == 0 else None)
                else: A(f"v_mfma_f32_16x16x32_bf16 v[{LA}:{LA+3}], v[{ONE}:{ONE+3}], v[{PF+4*u}:{PF+4*u+3}], v[{LA}:{LA+3}]", "l += ones . P^T" if u == 0 else None)
            for u in range(2):
                for dt in range(2):
                    A(f"s_waitcnt lgkmcnt({6-4*u-2*dt})")
                    o = O0 + 4*dt
                    a = AF + (2*u+dt)*4
                    if nsw: A(f"v_mfma_f32_16x16x32_bf16 v[{o}:{o+3}], v[{PF+4*u}:{PF+4*u+3}], v[{a}:{a+3}], v[{o}:{o+3}]", "O += P . V" if u+dt == 0 else None)
                    else: A(f"v_mfma_f32_16x16x32_bf16 v[{o}:{o+3}], v[{a}:{a+3}], v[{PF+4*u}:{PF+4*u+3}], v[{o}:{o+3}]", "O^T += V^T . P^T" if u+dt == 0 else None)
        A("s_cbranch_scc1 L_v")
    if cyc: A("s_memtime s[52:53]")
    if nsw == 2:
        C("---- out[q][32c + 16dt + 4g + i] = O / l")
        A(f"v_rcp_f32 v14, v{LA}", "9 wait states after the last l MFMA")
        A("s_nop 2", "8 wait states after the last MFMA into each accumulator")
        for dt in range(2):
            o = O0 + 4*dt
            A(f"v_pk_mul_f32 v[{o}:{o+1}], v[{o}:{o+1}], v[14:15] op_sel_hi:[1,0]")
            A(f"v_pk_mul_f32 v[{o+2}:{o+3}], v[{o+2}:{o+3}], v[14:15] op_sel_hi:[1,0]")
            A(f"v_cvt_pk_bf16_f32 v{T+2*dt}, v{o}, v{o+1}")
            A(f"v_cvt_pk_bf16_f32 v{T+2*dt+1}, v{o+2}, v{o+3}")
            A(f"ds_write_b64 v{vSel}, v[{T+2*dt}:{T+2*dt+1}] offset:{32*dt}")
        A(f"ds_read_b128 v[{AF}:{AF+3}], v2", "same wave, LDS keeps the order")
        A("s_waitcnt lgkmcnt(0)")
        A(f"buffer_store_dwordx4 v[{AF}:{AF+3}], v{vOo}, s[24:27], 0 offen {stflags}".rstrip())
    elif nsw:
        C("---- out[4g + i][32c + 16dt + r] = O / l; neighbouring lanes pair their columns into dwords")
        for i in range(4):
            A(f"v_rcp_f32 v{T+i}, v{LA+i}", "9 wait states after the last l MFMA" if i == 0 else None)
        A("s_nop 0", "8 wait states after the last MFMA into each accumulator")
        for i in range(4):
            A(f"v_pk_mul_f32 v[{O0+2*i}:{O0+2*i+1}], v[{O0+2*i}:{O0+2*i+1}], v[{T+2*(i&1)}:{T+2*(i&1)+1}]")
        for i in range(4):
            A(f"v_cvt_pk_bf16_f32 v{AF+i}, v{O0+i}, v{O1+i}")
        for i in range(4):
            A(f"v_mov_b32_dpp v{AF+4+i}, v{AF+i} quad_perm:[1,0,3,2] row_mask:0xf bank_mask:0xf")
        for i in range(4):
            A(f"v_perm_b32 v{AF+8+i}, v{AF+4+i}, v{AF+i}, v{vSel}")
            A(f"buffer_store_dword v{AF+8+i}, v{vOo}, s[24:27], 0 offen offset:{256*i} {stflags}".rstrip())
    else:
        C("---- out[q][32c + 8g .. +8] = O / l")
        A(f"v_rcp_f32 v2, v{LA}", "9 wait states after the last l MFMA")
        A("s_nop 3", "8 wait states after the last MFMA into each accumulator")
        for i in range(4):
            A(f"v_pk_mul_f32 v[{O0+2*i}:{O0+2*i+1}], v[{O0+2*i}:{O0+2*i+1}], v[2:3] op_sel_hi:[1,0]")
        for i in range(4):
            A(f"v_cvt_pk_bf16_f32 v{T+i}, v{O0+2*i}, v{O0+2*i+1}")
        A(f"buffer_store_dwordx4 v[{T}:{T+3}], v{vOo}, s[24:27], 0 offen {stflags}".rstrip())
    if cyc:
        A("s_memtime s[54:55]")
        A("s_waitcnt vmcnt(0)")
        A("s_memtime s[56:57]")
        A("s_load_dwordx2 s[40:41], s[0:1], 40")
        A("s_waitcnt lgkmcnt(0)")
        for k in range(4): A(f"s_sub_u32 s{50+2*k}, s{50+2*k}, s48")
        A(f"s_mul_i32 s31, s2, 256"); A("s_lshl_b32 s3, s3, 4"); A("s_add_u32 s31, s31, s3")
        A("v_mov_b32 v8, s50"); A("v_mov_b32 v9, s52"); A("v_mov_b32 v10, s54"); A("v_mov_b32 v11, s56")
        A("v_mov_b32 v1, s31")
        A("global_store_dwordx4 v1, v[8:11], s[40:41]")
    if amp and amp[0] in ('cend', 'tail'):
        A("s_cmp_lg_u32 s3, 3"); A("s_cbranch_scc1 L_end"); A("s_waitcnt vmcnt(0)"); A("s_branch L_amp")
    if ts:
        A("s_cmp_lg_u32 s3, 0"); A("s_cbranch_scc1 L_nst")
        A("s_mul_i32 s31, s2, 256"); A("v_lshlrev_b32 v13, 2, v1"); A("v_add_u32 v13, s31, v13")
        A("s_mov_b64 s[30:31], exec"); A("s_mov_b32 exec_lo, 0xff000000"); A("s_mov_b32 exec_hi, 0xff")
        A("s_waitcnt vmcnt(0)"); A("s_memrealtime s[44:45]")
        A("global_store_dword v13, v0, s[40:41]")
        A("s_mov_b64 exec, s[30:31]"); A("s_mov_b32 s3, 1"); A("s_branch L_fin2")
        A("L_nst:")
        A("s_add_u32 s3, s3, 1")
        A("L_fin:")
        A("s_waitcnt vmcnt(0)"); A("s_memrealtime s[44:45]")
        A("L_fin2:")
        A("s_getreg_b32 s46, hwreg(HW_REG_XCC_ID)")
        A("s_waitcnt lgkmcnt(0)")
        A("s_mov_b32 s47, s38")
        A(f"s_mul_i32 s31, s2, 256"); A("s_lshl_b32 s3, s3, 4"); A("s_add_u32 s31, s31, s3")
        A("v_mov_b32 v8, s42"); A("v_mov_b32 v9, s44"); A("v_mov_b32 v10, s46"); A("v_mov_b32 v11, s47")
        A("v_mov_b32 v1, s31")
        A("global_store_dwordx4 v1, v[8:11], s[40:41]")
    A("s_endpgm")
    C("======================= wave 5: balance =======================")
    A("L_bal:")
    A("s_load_dwordx2 s[16:17], s[0:1], 32", "d_debug SRD s[16:19]")
    if xg: A("s_load_dwordx2 s[34:35], s[0:1], 40", "d_ws")
    A("s_getreg_b32 s30, hwreg(HW_REG_XCC_ID, 0, 1)", "odd dies see a slightly shorter latency: bias them to the small depth")
    A("s_and_b32 s20, s2, 7")
    A("s_lshl_b32 s20, s20, 5")
    A("v_mov_b32 v6, s20", "32 counts of this group")
    A("s_lshr_b32 s21, s2, 3")
    A("s_add_u32 s20, s20, s21")
    A("v_mov_b32 v4, s20", "own count")
    A("v_mov_b32 v5, 1")
    A(f"v_mov_b32 v7, {LB}")
    A(f"v_mov_b32 v14, {f0}")
    A("ds_write_b32 v7, v14")
    A(f"s_mul_i32 s30, s30, {eo}")
    mid = (xg*7)//2
    A(f"s_add_u32 s30, s30, {32 - bias - thr + mid}")
    A("v_mov_b32 v15, s30", "sum of counts at or below this: ahead of the group")
    A("s_movk_i32 s18, 0x100")
    A("s_mov_b32 s19, 0x20000")
    A("s_mov_b32 s23, 0")
    if xg:
        A("s_mov_b32 s24, 0")
        A("s_mov_b32 s25, 0")
        A("s_mov_b32 s26, 0")
        A(f"v_mul_u32_u24 v8, {XSTR}, v1")
        A("s_waitcnt lgkmcnt(0)")
        if ts or amp or cyc:
            A(f"s_add_u32 s34, s34, {XBASE}")
            A("s_addc_u32 s35, s35, 0")
        A("s_cmp_lg_u32 s21, 0")
        A("s_cbranch_scc1 L_bnl")
        A(f"s_mov_b32 s24, {mid}")
        A("s_mov_b32 exec_hi, 0")
        A(f"global_load_dword v9, v8, s[34:35] {xbf}", "entry values of the arrival counters")
        A("L_bnl:")
        A("v_add_u32 v10, s24, v5")
    A("s_mov_b64 exec, 1")
    A("s_waitcnt lgkmcnt(0)")
    if tbal:
        A("v_mov_b32 v8, 0")
        if 'd' in tbal: A("buffer_load_dword v12, v6, s[16:19], 0 offen nt")
        if 'v' in tbal:
            A("s_lshl_b32 s29, s28, 19"); A("s_add_u32 s20, s8, s29"); A("s_addc_u32 s21, s9, 0")
            A("global_load_dword v10, v8, s[20:21] nt")
        if 'o' in tbal:
            A("s_lshl_b32 s29, s28, 12"); A("s_add_u32 s24, s10, s29"); A("s_addc_u32 s25, s11, 0")
            A("global_load_dword v11, v8, s[24:25]")
    def sample(X):
        A(f"buffer_load_dwordx4 v[{X}:{X+3}], v6, s[16:19], 0 offen nt")
        A(f"buffer_load_dwordx4 v[{X+4}:{X+7}], v6, s[16:19], 0 offen offset:16 nt")
        A(f"buffer_store_byte v{10 if xg else 5}, v4, s[16:19], 0 offen")
    A("s_barrier")
    sample(16)
    A("L_bl:")
    for par in range(2):
        X = 16 + 8*(1-par); Y = 16 + 8*par
        A("v_add_u32 v5, 1, v5")
        if xg: A("v_add_u32 v10, s24, v5")
        A("s_barrier")
        sample(X)
        if xg and par == 1:
            A("s_cmp_lg_u32 s21, 0")
            A("s_cbranch_scc1 L_bn2")
            if xlate:
                A("s_waitcnt lgkmcnt(0)")
                A("s_mov_b32 s37, s26")
            A("s_mov_b32 s26, 1")
            A("s_atomic_add s26, s[34:35], s25 glc", "arrival at this checkpoint; the result is used at the next one")
            A(f"s_add_u32 s25, s25, {XSTR}")
            if xlate:
                A("s_cmp_lt_u32 s23, 2")
                A("s_cbranch_scc1 L_bn2")
                A("s_lshr_b32 s27, s23, 1")
                A("s_sub_u32 s27, s27, 1")
                A("v_readlane_b32 s27, v9, s27")
                A("s_nop 0")
                A("s_sub_u32 s37, s37, s27")
                A("s_min_u32 s37, s37, 7")
                A(f"s_mul_i32 s24, s37, {xg}", "added to the count this workgroup publishes")
                A("s_cmp_ge_u32 s23, 55", "no more arrivals near the end")
                A("s_cselect_b32 s21, 1, s21")
            A("L_bn2:")
        if XT and par == (XT-3) % 2:
            A(f"s_cmp_eq_u32 s23, {XT-3}")
            A("s_cbranch_scc0 L_bnx")
            A("s_barrier", "the loader's extra barrier")
            A("L_bnx:")
        A("s_waitcnt vmcnt(3)", "the sample taken at the previous barrier")
        A(f"v_sad_u8 v14, v{Y}, 0, 0")
        for k in range(1, 8):
            A(f"v_sad_u8 v14, v{Y+k}, 0, v14")
        if fhi:
            A(f"s_sub_u32 s24, s23, {fhi[0]-4}"); A(f"s_cmp_lt_u32 s24, {fhi[1]}"); A("s_cselect_b32 s24, 64, 0")
            A("v_add_u32 v14, s24, v14")
        if flo:
            A(f"s_sub_u32 s24, s23, {flo[0]-4}"); A(f"s_cmp_lt_u32 s24, {flo[1]}"); A("s_cselect_b32 s24, 64, 0")
            A("v_subrev_u32 v14, s24, v14")
        A("v_cmp_le_u32 vcc, v14, v15")
        A("v_add_u32 v15, 32, v15")
        A("s_add_u32 s23, s23, 1")
        if boost:
            A("v_cndmask_b32 v13, 0, 1, vcc")
            A(f"v_add_u32 v14, {32 - boost[0]}, v14")
            A("v_cmp_gt_u32 vcc, v14, v15", "far behind")
            A("s_nop 1")
            A("v_cndmask_b32 v14, v13, 2, vcc")
        else:
            A("v_cndmask_b32 v14, 0, 1, vcc")
        A("ds_write_b32 v7, v14")
        if xg and par == 0 and not xlate:
            A("s_cmp_lg_u32 s21, 0")
            A("s_cbranch_scc1 L_bn3")
            A("s_cmp_lt_u32 s23, 2")
            A("s_cbranch_scc1 L_bn3")
            A("s_lshr_b32 s27, s23, 1")
            A("s_sub_u32 s27, s27, 1")
            A("v_readlane_b32 s27, v9, s27")
            A("s_waitcnt lgkmcnt(0)")
            A("s_sub_u32 s26, s26, s27")
            A("s_min_u32 s26, s26, 7")
            A(f"s_mul_i32 s24, s26, {xg}")
            A("L_bn3:")
    A(f"s_cmp_lt_u32 s23, {fbstop}")
    A("s_cbranch_scc1 L_bl")
    if xb: A("s_barrier", "lets the last sample land; later barriers count the surviving waves only")
    if amp:
        A("s_endpgm")
        A("L_amp:")
        ampcode()
    A("L_end:")
    body_txt = "\n".join((x if (x.endswith(":") or x.startswith(";")) else "    "+x) for x in L)
    txt = HEADER.format(lds=lds, kn=KN) + body_txt + TAIL.format(kn=KN, vgpr=nv, sgpr=80 if tl else 64 if cyc else 48 if (ts or amp or sync) else 40, acc=(nv+3)//4*4)
    if al12:
        txt = txt.replace(".p2align 8\n.type", ".p2align 12                 ; the whole kernel inside one 4 KiB page: instruction prefetch stops at page ends\n.p2align 8\n.type", 1)
    open(name+".s", "w").write(txt)
    return build(name+".s")
if __name__ == "__main__":
    print(gen("v5"))
```

```python
import os,sys,shutil
os.chdir('work'); sys.path.insert(0,'.')
from gen4 import gen
F=dict(XT=41,nsw=2,shb=7,xlate=True,xg=2,thr=3,boost=(21,24),qfirst=1,al12=True,codepf=False)
if __name__ == "__main__":
    print(gen('v9', **F))
    gen('sb_cend', amp=('cend','span'), **F)
    for n in ('v9','sb_cend'):
        for i in 'abc': shutil.copy(n+'.s', n+i+'.s')
    shutil.copy('v9.s','../cdna_kernels/standalone__gqa_softmax__sampling.s')
```
